```python
import torch

def _softmax(x, axis=-1):
    return torch.softmax(x, dim=axis)
def _gelu(x):
    return torch.nn.functional.gelu(x, approximate="tanh")
def _silu(x):
    return torch.nn.functional.silu(x)
def _sigmoid(x):
    return torch.sigmoid(x)
def _layernorm(x, axis=-1, eps=1e-5):
    m = x.mean(dim=axis, keepdim=True)
    v = x.var(dim=axis, keepdim=True, unbiased=False)
    return (x - m) / torch.sqrt(v + eps)
def _scatter_add(tgt, idx, src, axis=0):
    return tgt.clone().index_add_(axis, idx, src)
def _segment_sum(src, seg, n):
    out = torch.zeros((n,) + src.shape[1:], dtype=src.dtype)
    return out.index_add_(0, seg, src)
def _pad(x, pw):
    flat = tuple(v for pair in reversed(pw) for v in pair)
    return torch.nn.functional.pad(x, flat)

kernel_name = 'standalone__softmax_full_bidir__sampling'

def setup_inputs():

    _w = (lambda a: (lambda t: t.to(torch.bfloat16) if t.is_floating_point() else t)(torch.as_tensor(a)))
    B, H, Sq, Skv, Dh = 16, 32, 1, 2048, 128
    return {
        "q": _w((lambda *s: torch.randn(*s, dtype=torch.bfloat16) * 0.8)(B, H, Sq, Dh)),
        "k": _w((lambda *s: torch.randn(*s, dtype=torch.bfloat16) * 0.8)(B, H, Skv, Dh)),
        "v": _w((lambda *s: torch.randn(*s, dtype=torch.bfloat16) * 0.05)(B, H, Skv, Dh)),
    }

def reference(q, k, v):
    scale = q.shape[-1] ** -0.5
    scores = torch.einsum('bhqd,bhkd->bhqk', q, k) * scale
    attn = _softmax(scores, axis=-1)
    return torch.einsum('bhqk,bhkd->bhqd', attn, v)
```

```python
import struct, math
from asmutil import *

def f2u(x): return struct.unpack("<I", struct.pack("<f", x))[0]

def gen(W=4, T=16, flags="nt", interleave=True, remap=0):
    nchunks = 2048 // (4 * T) // W
    CH = T * 1024
    L = []
    A = L.append
    NV = (T + 3) // 4
    voff = list(range(1, 1 + NV))
    r = 1 + NV
    r = (r + 1) // 2 * 2
    q = r; r += 4
    acc = r; r += 8
    m = r; l = r + 1; plo = r + 2; phi = r + 3; t0 = r + 4; t1 = r + 5; t2 = r + 6; t3 = r + 7; r += 8
    P = r; r += T
    r = (r + 1) // 2 * 2
    KR = r; r += 4 * T
    VR = r; r += 4 * T
    nv = r
    sK = 12; sV = 16; sQ = 20; sO = 24; sOff = 28; sC = 29; sIt = 30; sW = 31; sM1 = 32; sM2 = 34; sT = 36; sH = 38
    A("s_cmp_ge_u32 s2, 512")
    A("s_cbranch_scc1 L_end")
    A("s_load_dwordx4 s[4:7], s[0:1], 0")
    A("s_load_dwordx4 s[8:11], s[0:1], 16")
    if remap == 0:
        A(f"s_mov_b32 s{sH}, s2")
    else:
        A(f"s_and_b32 s{sH}, s2, 7")
        A(f"s_lshl_b32 s{sH}, s{sH}, 6")
        A(f"s_lshr_b32 s{sT}, s2, 3")
        A(f"s_add_u32 s{sH}, s{sH}, s{sT}")
    A(f"v_lshrrev_b32 v{t0}, 6, v0")
    A(f"v_and_b32 v0, 63, v0")
    A(f"v_readfirstlane_b32 s{sW}, v{t0}")
    A(f"v_lshlrev_b32 v{voff[0]}, 4, v0")
    for i in range(1, NV):
        A(f"v_add_u32 v{voff[i]}, {4096*i}, v{voff[0]}")
    A(f"v_and_b32 v{t1}, 15, v0")
    A(f"v_lshlrev_b32 v{t1}, 4, v{t1}")
    A(f"s_lshl_b32 s{sT}, s{sH}, 19")
    A(f"s_lshl_b32 s{sT+1}, s{sH}, 8")
    if interleave:
        A(f"s_mul_i32 s{sOff}, s{sW}, {CH}"); step = CH * W
    else:
        A(f"s_mul_i32 s{sOff}, s{sW}, {CH*nchunks}"); step = CH
    A(f"s_mov_b32 s{sK+2}, 0x80000"); A(f"s_mov_b32 s{sK+3}, 0x20000")
    A(f"s_mov_b32 s{sV+2}, 0x80000"); A(f"s_mov_b32 s{sV+3}, 0x20000")
    A(f"s_mov_b32 s{sQ+2}, 256"); A(f"s_mov_b32 s{sQ+3}, 0x20000")
    A(f"s_mov_b32 s{sO+2}, 256"); A(f"s_mov_b32 s{sO+3}, 0x20000")
    A("s_waitcnt lgkmcnt(0)")
    A(f"s_add_u32 s{sQ}, s4, s{sT+1}"); A(f"s_addc_u32 s{sQ+1}, s5, 0")
    A(f"s_add_u32 s{sK}, s6, s{sT}"); A(f"s_addc_u32 s{sK+1}, s7, 0")
    A(f"buffer_load_dwordx4 v[{q}:{q+3}], v{t1}, s[{sQ}:{sQ+3}], 0 offen")
    def ld(reg, srd, t):
        A(f"buffer_load_dwordx4 v[{reg+4*t}:{reg+4*t+3}], v{voff[t//4]}, s[{srd}:{srd+3}], s{sOff} offen offset:{(t%4)*1024} {flags}")
    for t in range(T): ld(KR, sK, t)
    A(f"s_add_u32 s{sV}, s8, s{sT}"); A(f"s_addc_u32 s{sV+1}, s9, 0")
    for t in range(T): ld(VR, sV, t)
    A(f"s_add_u32 s{sO}, s10, s{sT+1}"); A(f"s_addc_u32 s{sO+1}, s11, 0")
    for i in range(8): A(f"v_mov_b32 v{acc+i}, 0")
    A(f"v_mov_b32 v{m}, 0xff800000")
    A(f"v_mov_b32 v{l}, 0")
    A(f"s_mov_b32 s{sC}, 0x{f2u(128**-0.5*math.log2(math.e)):08x}")
    A(f"s_mov_b32 s{sM1}, 0xaaaaaaaa"); A(f"s_mov_b32 s{sM1+1}, 0xaaaaaaaa")
    A(f"s_mov_b32 s{sM2}, 0xcccccccc"); A(f"s_mov_b32 s{sM2+1}, 0xcccccccc")
    A(f"s_mov_b32 s{sIt}, {nchunks}")
    A("L_loop:")
    A(f"s_add_u32 s{sOff}, s{sOff}, {step}")
    A(f"s_sub_u32 s{sIt}, s{sIt}, 1")
    A(f"s_cmp_eq_u32 s{sIt}, 0")
    A(f"s_cselect_b32 s{sK+2}, 0, 0x80000")
    A(f"s_cselect_b32 s{sV+2}, 0, 0x80000")
    R = 2 * T
    for t in range(T):
        A(f"s_waitcnt vmcnt({R-1})")
        k = KR + 4 * t
        A(f"v_dot2_f32_bf16 v{P+t}, v{k}, v{q}, 0")
        for e in range(1, 4): A(f"v_dot2_f32_bf16 v{P+t}, v{k+e}, v{q+e}, v{P+t}")
        ld(KR, sK, t)
    A("s_nop 1")
    full = "row_mask:0xf bank_mask:0xf"
    n = T
    if T == 16:
        steps = [("row_ror:8", 0x3, 0xc), ("row_half_mirror", 0x5, 0xa)]
    elif T == 8:
        steps = [("row_ror:8", 0x3, 0xc), ("row_half_mirror", 0x5, 0xa)]
    for (ctl, ma, mb) in steps:
        h = n // 2
        for t in range(h):
            A(f"v_add_f32_dpp v{P+t}, v{P+t}, v{P+t} {ctl} row_mask:0xf bank_mask:0x{ma:x}")
        for t in range(h):
            A(f"v_add_f32_dpp v{P+t}, v{P+t+h}, v{P+t+h} {ctl} row_mask:0xf bank_mask:0x{mb:x}")
        n = h
        if h < 4: A("s_nop 1")
    for t in range(n):
        A(f"v_add_f32_dpp v{P+t}, v{P+t}, v{P+t} quad_perm:[2,3,0,1] {full}")
    h = n // 2
    for t in range(h):
        A(f"v_cndmask_b32 v{P+t}, v{P+t}, v{P+t+h}, s[{sM2}:{sM2+1}]")
    n = h
    A("s_nop 1")
    for t in range(n):
        A(f"v_add_f32_dpp v{P+t}, v{P+t}, v{P+t} quad_perm:[1,0,3,2] {full}")
    if n == 2:
        A(f"v_cndmask_b32 v{P}, v{P}, v{P+1}, s[{sM1}:{sM1+1}]")
    A(f"v_mul_f32 v{P}, s{sC}, v{P}")
    A("s_nop 1")
    A(f"v_max_f32_dpp v{t0}, v{P}, v{P} row_ror:8 {full}")
    A("s_nop 1")
    A(f"v_max_f32_dpp v{t0}, v{t0}, v{t0} row_ror:4 {full}")
    A("s_nop 1")
    A(f"v_max_f32_dpp v{t0}, v{t0}, v{t0} row_ror:2 {full}")
    A("s_nop 1")
    A(f"v_max_f32_dpp v{t0}, v{t0}, v{t0} row_ror:1 {full}")
    A(f"v_max_f32 v{t0}, v{t0}, v{m}")
    A(f"v_sub_f32 v{t1}, v{m}, v{t0}")
    A(f"v_sub_f32 v{t2}, v{P}, v{t0}")
    A(f"v_exp_f32 v{t1}, v{t1}")
    A(f"v_exp_f32 v{t2}, v{t2}")
    A(f"v_mov_b32 v{m}, v{t0}")
    A(f"v_cvt_pk_bf16_f32 v{plo}, v{t2}, 0")
    A(f"v_cvt_pk_bf16_f32 v{phi}, 0, v{t2}")
    for i in range(8): A(f"v_mul_f32 v{acc+i}, v{t1}, v{acc+i}")
    A(f"v_fma_f32 v{l}, v{l}, v{t1}, v{phi}")
    for t in range(T):
        A(f"s_waitcnt vmcnt({R-1})")
        v = VR + 4 * t
        lane = t if T == 16 else 2 * t
        for e in range(4):
            A(f"v_dot2c_f32_bf16_dpp v{acc+2*e}, v{plo}, v{v+e} row_newbcast:{lane} {full}")
            A(f"v_dot2c_f32_bf16_dpp v{acc+2*e+1}, v{phi}, v{v+e} row_newbcast:{lane} {full}")
        ld(VR, sV, t)
    A(f"s_cmp_lg_u32 s{sIt}, 0")
    A("s_cbranch_scc1 L_loop")
    A(f"v_mov_b32 v{t0}, v{m}"); A(f"v_mov_b32 v{t1}, v{m}")
    A("s_nop 1")
    A(f"v_permlane32_swap_b32 v{t0}, v{t1}")
    A("s_nop 1")
    A(f"v_max_f32 v{t0}, v{t0}, v{t1}")
    A(f"v_mov_b32 v{t1}, v{t0}")
    A("s_nop 1")
    A(f"v_permlane16_swap_b32 v{t0}, v{t1}")
    A("s_nop 1")
    A(f"v_max_f32 v{t0}, v{t0}, v{t1}")
    A(f"v_sub_f32 v{t1}, v{m}, v{t0}")
    A(f"v_exp_f32 v{t1}, v{t1}")
    A("s_nop 0")
    A(f"v_mul_f32 v{l}, v{t1}, v{l}")
    for i in range(8): A(f"v_mul_f32 v{acc+i}, v{t1}, v{acc+i}")
    A(f"v_add_f32_dpp v{l}, v{l}, v{l} row_ror:8 {full}")
    for i in range(4): A(f"v_permlane32_swap_b32 v{acc+i}, v{acc+i+4}")
    A(f"v_add_f32_dpp v{l}, v{l}, v{l} row_ror:4 {full}")
    for i in range(4): A(f"v_add_f32 v{acc+i}, v{acc+i}, v{acc+i+4}")
    A(f"v_add_f32_dpp v{l}, v{l}, v{l} row_ror:2 {full}")
    A("s_nop 0")
    for i in range(2): A(f"v_permlane16_swap_b32 v{acc+i}, v{acc+i+2}")
    A(f"v_add_f32_dpp v{l}, v{l}, v{l} row_ror:1 {full}")
    for i in range(2): A(f"v_add_f32 v{acc+i}, v{acc+i}, v{acc+i+2}")
    A(f"v_mov_b32 v{t1}, v{l}")
    A("s_nop 1")
    A(f"v_permlane32_swap_b32 v{l}, v{t1}")
    A("s_nop 1")
    A(f"v_add_f32 v{l}, v{l}, v{t1}")
    A(f"v_mov_b32 v{t1}, v{l}")
    A("s_nop 1")
    A(f"v_permlane16_swap_b32 v{l}, v{t1}")
    A("s_nop 1")
    A(f"v_add_f32 v{acc+3}, v{l}, v{t1}")
    if T == 8: A(f"v_mul_f32 v{acc+3}, 0.5, v{acc+3}")
    A(f"v_mov_b32 v{acc+2}, v{t0}")
    A(f"v_lshlrev_b32 v{t2}, 4, v0")
    A(f"s_lshl_b32 s{sT}, s{sW}, 10")
    A(f"v_add_u32 v{t3}, s{sT}, v{t2}")
    A(f"ds_write_b128 v{t3}, v[{acc}:{acc+3}]")
    A("s_waitcnt lgkmcnt(0)")
    A("s_barrier")
    A(f"s_cmp_lg_u32 s{sW}, 0")
    A("s_cbranch_scc1 L_end")
    X = KR
    A("s_waitcnt vmcnt(0)")
    for w in range(W): A(f"ds_read_b128 v[{X+4*w}:{X+4*w+3}], v{t2} offset:{1024*w}")
    A(f"v_and_b32 v{t0}, 15, v0"); A(f"v_lshlrev_b32 v{t0}, 4, v{t0}")
    A(f"v_lshrrev_b32 v{t1}, 4, v0"); A(f"v_lshl_add_u32 v{t3}, v{t1}, 2, v{t0}")
    A("s_waitcnt lgkmcnt(0)")
    A(f"v_max_f32 v{t0}, v{X+2}, v{X+6}")
    for w in range(2, W): A(f"v_max_f32 v{t0}, v{t0}, v{X+4*w+2}")
    for w in range(W): A(f"v_sub_f32 v{X+4*w+2}, v{X+4*w+2}, v{t0}")
    for w in range(W): A(f"v_exp_f32 v{X+4*w+2}, v{X+4*w+2}")
    A("s_nop 0")
    A(f"v_mul_f32 v{acc}, v{X}, v{X+2}"); A(f"v_mul_f32 v{acc+1}, v{X+1}, v{X+2}"); A(f"v_mul_f32 v{l}, v{X+3}, v{X+2}")
    for w in range(1, W):
        A(f"v_fmac_f32 v{acc}, v{X+4*w}, v{X+4*w+2}"); A(f"v_fmac_f32 v{acc+1}, v{X+4*w+1}, v{X+4*w+2}"); A(f"v_fmac_f32 v{l}, v{X+4*w+3}, v{X+4*w+2}")
    A(f"v_rcp_f32 v{l}, v{l}")
    A("s_nop 0")
    A(f"v_mul_f32 v{acc}, v{acc}, v{l}"); A(f"v_mul_f32 v{acc+1}, v{acc+1}, v{l}")
    A(f"v_cvt_pk_bf16_f32 v{acc}, v{acc}, v{acc+1}")
    A(f"buffer_store_dword v{acc}, v{t3}, s[{sO}:{sO+3}], 0 offen")
    A("L_end:")
    A("s_endpgm")
    body = "\n".join(("" if x.endswith(":") else "    ") + x for x in L) + "\n"
    return wrap(body, 512, 64 * W, 1024 * W, nv, 48)

if __name__ == "__main__":
    specs = []
    for (W, T) in [(4, 16), (8, 8), (4, 8)]:
        for fl, fn in [("nt", "nt"), ("", "df")]:
            for il in (True, False):
                specs.append(build(gen(W, T, fl, il), f"v1_w{W}t{T}_{fn}_{'il' if il else 'bl'}"))
    print(" ".join(specs))
    open("standalone__softmax_full_bidir__sampling.s", "w").write(gen(4, 16, "nt", True))
```

```python
import struct, math, json
from asmutil import *
def f2u(x): return struct.unpack("<I", struct.pack("<f", x))[0]
full = "row_mask:0xf bank_mask:0xf"
def brev4(t): return int(f"{t:04b}"[::-1], 2)

BP4 = {
  "k":  (9, [12, 13], [10, 11, 15, 16], [17, 18, 14], [(2, 13)]),
  "m":  (9, [12, 13], [10, 11, 15, 16], [17, 18, 14], [(2, 13), (2, 12)]),
  "c":  (9, [12, 13], [10, 11, 15, 16], [17, 18, 14], [(2, 13), (3, 12)]),
  "b":  (9, [12, 13], [10, 11, 15, 16], [14, 17, 18], [(2, 13)]),
  "s":  (9, [12, 13], [10, 11, 15, 17], [16, 18, 14], [(2, 13)]),
  "r":  (9, [12, 13], [10, 11, 16, 17], [15, 18, 14], [(2, 13)]),
  "l":  (9, [12, 13], [10, 11, 15, 16], [17, 18, 14], [(1, 13)]),
  "t":  (14, [12, 13], [9, 10, 11, 15], [16, 17, 18], [(3, 13)]),
  "u":  (14, [12, 13], [9, 10, 11, 15], [16, 17, 18], [(2, 13)]),
  "v":  (14, [12, 13], [9, 10, 15, 11], [16, 17, 18], [(2, 13)]),
  "w":  (13, [12, 14], [9, 10, 11, 15], [16, 17, 18], []),
  "x":  (13, [12, 14], [9, 10, 15, 11], [16, 17, 18], []),
  "y":  (15, [12, 13], [9, 10, 11, 16], [17, 18, 14], [(3, 13)]),
  "z":  (15, [12, 13], [9, 10, 11, 16], [17, 18, 14], [(2, 13)]),
}
def gen(F=6, FL=5, st=0, lds=98304, Tn=216, mg=45, RD=3, NS=8, ep=0, fI=4, ctl=1, rsh=None, align=1, flags="nt", ra2=0, bp=None, of="", mg2=None, half=0, FEe=None, lazy=0):
    W = 4; B = 16; R = 8; NC = 8
    lg = int(math.log2(NS)); SH = 5 + lg
    L = []; A = L.append
    voff = 1; voff2 = 2; qoff = 3
    q = 4
    acc = 8
    m = 16; l = 17; plo = 18; phi = 19; t0 = 20; t1 = 21; t2 = 22; t3 = 23
    P = 24
    Q = 40
    fw = 46; tv = 47
    S = 48
    oadr = 56; ladr = 57; zero = 58; stv = 59
    ring = 60
    nv = ring + 4 * R
    X = P
    sCu = 4; sNx = 8; sQ = 12; sO = 16; sK = 20; sV = 22; sDb = 24
    sCur = 26; sNxt = 27; sOf = 28; sI = 29; sW = 30; sHo = 31; sPh = 32; sT = 33; sU = 34; sSc = 35; sH = 36; sHd = 37
    sM1 = 38; sM2 = 40; sTm = 42; sExp = 44; sRef = 45; sPub = 46; sCk = 47; sOwn = 48; sSk = 49; sRot = 50; sLd = 51; sLv = 52; sT2 = 54
    nsg = 58
    if st: A("s_memrealtime s[60:61]")
    A(f"s_load_dwordx2 s[{sCu}:{sCu+1}], s[0:1], 8")
    A(f"s_load_dwordx2 s[{sQ}:{sQ+1}], s[0:1], 0")
    def late_loads():
        A(f"s_load_dwordx4 s[{sK}:{sK+3}], s[0:1], 8")
        A(f"s_load_dwordx2 s[{sO}:{sO+1}], s[0:1], 24")
        if ctl:
            A(f"s_load_dwordx2 s[{sDb}:{sDb+1}], s[0:1], 32")
            A(f"s_memrealtime s[{sTm}:{sTm+1}]")
        if st: A("s_load_dwordx2 s[58:59], s[0:1], 40")
    if not lazy: late_loads()
    A("s_cmpk_ge_u32 s2, 256")
    A("s_cbranch_scc1 L_end")
    if bp:
        l5, wb, lb, cb, xr = BP4[bp]
        A(f"v_and_b32 v{t1}, 63, v0")
        A(f"v_and_b32 v{voff}, 31, v0"); A(f"v_lshlrev_b32 v{voff}, 4, v{voff}")
        for src, dst in ((5, l5), (6, wb[0]), (7, wb[1])):
            A(f"v_bfe_u32 v{t0}, v0, {src}, 1"); A(f"v_lshl_add_u32 v{voff}, v{t0}, {dst}, v{voff}")
        masks = sorted({sum(1 << ab for (li, ab) in xr if (n >> li) & 1) for n in range(B)})
        vregs = {mk_: (voff if mk_ == 0 else nv + i) for i, mk_ in enumerate(masks)}
        for mk_, vr in vregs.items():
            if mk_: A(f"v_xor_b32 v{vr}, {mk_}, v{voff}")
        nv += 4
    else:
        A(f"v_and_b32 v{t0}, 0xc0, v0")
        A(f"v_and_b32 v{t1}, 63, v0")
        A(f"v_lshlrev_b32 v{t0}, 6, v{t0}")
        A(f"v_lshl_add_u32 v{voff}, v{t1}, 4, v{t0}")
    A(f"v_and_b32 v{qoff}, 15, v0")
    A(f"v_xor_b32 v{voff2}, 0x2000, v{voff}")
    A(f"v_lshlrev_b32 v{qoff}, 4, v{qoff}")
    A(f"s_lshl_b32 s{sPh}, s2, 20")
    A(f"s_lshl_b32 s{sH}, s2, 9")
    A(f"s_brev_b32 s{sCu+2}, 8")
    A(f"s_mov_b32 s{sCu+3}, 0x20000")
    A(f"s_mov_b32 s{sQ+2}, 0x20000"); A(f"s_mov_b32 s{sQ+3}, 0x20000")
    def chunk_off(d, i):
        if bp:
            for b, sh in enumerate(cb):
                A(f"s_and_b32 s{sU}, s{i}, {1 << b}"); A(f"s_lshl_b32 s{d if b == 0 else sU}, s{sU}, {sh - b}")
                if b: A(f"s_add_u32 s{d}, s{d}, s{sU}")
            return
        A(f"s_and_b32 s{sU}, s{i}, 3"); A(f"s_lshl_b32 s{d}, s{sU}, 17")
        A(f"s_and_b32 s{sU}, s{i}, 4"); A(f"s_lshl_b32 s{sU}, s{sU}, 12"); A(f"s_add_u32 s{d}, s{d}, s{sU}")
    if rsh is not None:
        A(f"s_lshr_b32 s{sRot}, s2, {rsh}"); chunk_off(sCur, sRot); A(f"s_add_u32 s{sCur}, s{sCur}, s{sPh}")
    else:
        A(f"s_mov_b32 s{sCur}, s{sPh}")
    A(f"s_add_u32 s{sOf}, s{sCur}, 32768")
    def ld(n, pro=False):
        slot = n % R
        srd, base, k = (sCu, sCur, n) if n < B else (sNx, sNxt, n - B)
        if bp:
            o = sum(1 << lb[i] for i in range(4) if (k >> i) & 1); lo = o & 4095; hi = o - lo
            if ld.force or (base, hi) != ld.key:
                if hi: A(f"s_add_u32 s{sOf}, s{base}, {hi}")
                ld.key = (base, hi); ld.force = False
            vo = vregs[sum(1 << ab for (li, ab) in xr if (k >> li) & 1)]
            A(f"buffer_load_dwordx4 v[{ring+4*slot}:{ring+4*slot+3}], v{vo}, s[{srd}:{srd+3}], s{sOf if hi else base} offen offset:{lo} {flags}")
            return
        g = k // 4
        if not pro and (k % 4 == 0 or ld.force):
            if g: A(f"s_add_u32 s{sOf}, s{base}, {g * 32768}")
            ld.force = False
        so = sOf if g else base
        A(f"buffer_load_dwordx4 v[{ring+4*slot}:{ring+4*slot+3}], v{voff2 if g % 2 else voff}, s[{srd}:{srd+3}], s{so} offen offset:{(k%4)*1024} {flags}")
    ld.force = False; ld.key = None
    if align: A(".p2align 6, , 60") if False else A("ALIGN64")
    A("s_waitcnt lgkmcnt(0)")
    ld(0, True)
    A(f"buffer_load_dwordx4 v[{q}:{q+3}], v{qoff}, s[{sQ}:{sQ+3}], s{sH} offen")
    for n in range(1, F): ld(n, True)
    if lazy: late_loads()
    A(f"v_lshrrev_b32 v{t0}, 6, v0")
    A(f"v_mov_b32 v0, v{t1}")
    A(f"v_readfirstlane_b32 s{sW}, v{t0}")
    A(f"s_brev_b32 s{sNx+2}, 8"); A(f"s_mov_b32 s{sNx+3}, 0x20000")
    A(f"s_mov_b32 s{sO+2}, 0x20000"); A(f"s_mov_b32 s{sO+3}, 0x20000")
    A(f"s_mov_b32 s{sHo}, s{sPh}")
    for i in range(8): A(f"v_mov_b32 v{acc+i}, 0")
    A(f"v_mov_b32 v{zero}, 0"); A(f"v_mov_b32 v{tv}, 0")
    A(f"s_mov_b32 s{sSc}, 0x{f2u(128**-0.5*math.log2(math.e)):08x}")
    A(f"s_mov_b32 s{sM1}, 0xaaaaaaaa"); A(f"s_mov_b32 s{sM1+1}, 0xaaaaaaaa")
    A(f"s_mov_b32 s{sM2}, 0xcccccccc"); A(f"s_mov_b32 s{sM2+1}, 0xcccccccc")
    A(f"s_mov_b32 s{sHd}, 0"); A(f"s_mov_b32 s{sI}, 0"); A(f"s_mov_b32 s{sSk}, 0"); A(f"s_mov_b32 s{sLd}, 0")
    A(f"v_and_b32 v{t0}, 15, v0"); A(f"v_lshlrev_b32 v{t0}, 4, v{t0}")
    A(f"v_lshrrev_b32 v{t2}, 4, v0"); A(f"v_lshl_add_u32 v{oadr}, v{t2}, 2, v{t0}")
    A(f"v_lshlrev_b32 v{ladr}, 3, v0")
    if ctl:
        A(f"s_cmp_lt_u32 s2, {NS}"); A(f"s_cselect_b32 s{sPub}, 1, 0"); A(f"s_cmp_eq_u32 s{sW}, 0"); A(f"s_cselect_b32 s{sPub}, s{sPub}, 0")
        A(f"s_mov_b32 s{sExp}, 0"); A(f"s_mov_b32 s{sCk}, 0")
    A("s_mov_b64 vcc, 0")
    if mg2 is not None: A(f"s_mov_b32 s{sLv}, {1 if FEe else 0}")
    A(f"ds_write_b128 v{zero}, v[{acc}:{acc+3}] offset:4224")
    A("s_waitcnt lgkmcnt(0)")
    if ctl: A(f"s_lshl_b32 s{sRef}, s{sTm}, {SH}"); A(f"s_add_u32 s{sRef}, s{sRef}, {(60 << SH) if FEe else 0x10000000}")
    A("s_barrier")
    if st: A(f"v_mov_b32 v{stv}, 0"); A("s_mov_b32 s57, 0"); A(f"s_waitcnt vmcnt({F-1})"); A("s_memrealtime s[62:63]")
    def pump(n, tag, skip=False):
        if ctl and mg2 is not None:
            A(f"s_cbranch_vccnz L_p{tag}{n}"); A(f"s_waitcnt vmcnt({F-2})")
            A(f"s_cmp_lg_u32 s{sLv}, 0"); A(f"s_cbranch_scc1 L_p{tag}{n}"); A(f"s_waitcnt vmcnt({F-3})"); A(f"L_p{tag}{n}:")
        elif ctl and FL < F:
            A(f"s_cbranch_vccnz L_p{tag}{n}"); A(f"s_waitcnt vmcnt({FL-1})"); A(f"L_p{tag}{n}:")
        A(f"s_waitcnt vmcnt({F-1})")
        if skip:
            A(f"s_cmp_lg_u32 s{sSk}, 0"); A(f"s_cbranch_scc1 L_s{tag}{n}"); ld.force = True; ld(n + F); A(f"L_s{tag}{n}:"); ld.force = True
        else:
            ld(n + F)
    def adv(first_other):
        A(f"s_add_u32 s{sI}, s{sI}, 1")
        if rsh is not None:
            A(f"s_add_u32 s{sT}, s{sI}, s{sRot}"); chunk_off(sNxt, sT)
        else:
            chunk_off(sNxt, sI)
        A(f"s_cmp_eq_u32 s{sI}, {NC}")
        a, b = (sV, sK) if first_other == "k" else (sK, sV)
        A(f"s_cselect_b64 s[{sNx}:{sNx+1}], s[{a}:{a+1}], s[{b}:{b+1}]")
        A(f"s_cselect_b32 s{sU}, s{sHo}, s{sPh}")
        A(f"s_add_u32 s{sNxt}, s{sNxt}, s{sU}")
    def sched1(tag):
        A("s_waitcnt lgkmcnt(0)")
        A(f"s_sub_u32 s{sOwn}, s{sTm}, s{sExp}")
        A(f"s_add_u32 s{sExp}, s{sExp}, {Tn}")
        if ra2 and tag == "v": return
        A(f"s_cmp_lg_u32 s{sI}, s{sPub}"); A(f"s_cbranch_scc1 L_a{tag}")
        A(f"s_lshl_b32 s{sT}, s{sOwn}, 5"); A(f"s_add_u32 s{sT}, s{sT}, 1")
        A(f"s_atomic_add s{sT}, s[{sDb}:{sDb+1}], s{sCk}")
        A(f"L_a{tag}:")
    def sched2(tag):
        if not (ra2 and tag == "v"):
            A(f"s_cmp_lg_u32 s{sI}, {RD + 1}"); A(f"s_cbranch_scc1 L_b{tag}")
            A(f"v_mov_b32 v{tv}, s{sCk}")
            A(f"s_add_u32 s{sCk}, s{sCk}, 64")
            A(f"global_load_dword v{tv}, v{tv}, s[{sDb}:{sDb+1}] sc1")
            A(f"L_b{tag}:")
            A(f"s_cmp_lg_u32 s{sI}, {RD + 2}"); A(f"s_cbranch_scc1 L_c{tag}")
            A(f"v_readfirstlane_b32 s{sT}, v{tv}")
            A(f"s_and_b32 s{sU}, s{sT}, 31"); A(f"s_cmp_eq_u32 s{sU}, {NS}"); A(f"s_cselect_b32 s{sRef}, s{sT}, s{sRef}")
            A(f"L_c{tag}:")
        A(f"s_lshl_b32 s{sOwn}, s{sOwn}, {SH}"); A(f"s_sub_u32 s{sOwn}, s{sOwn}, s{sRef}")
        decide()
    def decide():
        if mg2 is not None:
            A(f"s_cmp_gt_i32 s{sOwn}, {mg * (1 << SH)}"); A(f"s_cselect_b32 s{sLv}, 1, 0")
            A(f"s_cmp_gt_i32 s{sOwn}, {mg2 * (1 << SH)}"); A("s_cselect_b64 vcc, -1, 0")
        else:
            A(f"s_cmp_gt_i32 s{sOwn}, {mg * (1 << SH)}"); A("s_cselect_b64 vcc, -1, 0")
    def half0(): A(f"s_memrealtime s[{sT2}:{sT2+1}]")
    def half1():
        A("s_waitcnt lgkmcnt(0)")
        A(f"s_sub_u32 s{sOwn}, s{sT2}, s{sExp}"); A(f"s_add_u32 s{sOwn}, s{sOwn}, {Tn - Tn // 2}")
        A(f"s_lshl_b32 s{sOwn}, s{sOwn}, {SH}"); A(f"s_sub_u32 s{sOwn}, s{sOwn}, s{sRef}")
        decide()
    def stampw():
        if st: A("s_waitcnt lgkmcnt(0)"); A("s_mov_b32 m0, s57"); A("s_add_u32 s57, s57, 1"); A(f"v_writelane_b32 v{stv}, s{sTm}, m0")
    def L1(i):
        a, b = P + 2 * i, P + 2 * i + 1
        A(f"v_add_f32_dpp v{a}, v{a}, v{a} row_ror:8 row_mask:0xf bank_mask:0x3")
        A(f"v_add_f32_dpp v{a}, v{b}, v{b} row_ror:8 row_mask:0xf bank_mask:0xc")
    def L2(j):
        a, b = P + 4 * j, P + 4 * j + 2
        A(f"v_add_f32_dpp v{Q+j}, v{a}, v{a} row_half_mirror row_mask:0xf bank_mask:0x5")
        A(f"v_add_f32_dpp v{Q+j}, v{b}, v{b} row_half_mirror row_mask:0xf bank_mask:0xa")
    def L3(k):
        a, b = Q + 2 * k, Q + 2 * k + 1
        A(f"v_add_f32_dpp v{a}, v{a}, v{a} quad_perm:[2,3,0,1] {full}")
        A(f"v_add_f32_dpp v{b}, v{b}, v{b} quad_perm:[2,3,0,1] {full}")
        A(f"v_cndmask_b32 v{Q+4+k}, v{a}, v{b}, s[{sM2}:{sM2+1}]")
    def L4():
        A(f"v_add_f32_dpp v{Q+4}, v{Q+4}, v{Q+4} quad_perm:[1,0,3,2] {full}")
        A(f"v_add_f32_dpp v{Q+5}, v{Q+5}, v{Q+5} quad_perm:[1,0,3,2] {full}")
        A(f"v_cndmask_b32 v{S+7}, v{Q+4}, v{Q+5}, s[{sM1}:{sM1+1}]")
    def shift():
        for j in range(7): A(f"v_mov_b32 v{S+j}, v{S+j+1}")
    A("L_k:")
    if ctl or st: A(f"s_memrealtime s[{sTm}:{sTm+1}]")
    ld.force = True
    fill = {0: [lambda: L1(7)], 1: [lambda: L2(3), shift], 2: [lambda: L1(0), lambda: L3(1)], 3: [L4, lambda: adv("k")],
            4: [lambda: L1(1)], 5: [lambda: L2(0)], 6: [lambda: L1(2)], 8: [lambda: L1(3)], 9: [lambda: L2(1)],
            10: [lambda: L1(4), lambda: L3(0)], 12: [lambda: L1(5)], 13: [lambda: L2(2)], 14: [lambda: L1(6)]}
    if ctl:
        if half:
            fill.setdefault(4, []).append(lambda: sched1("k")); fill.setdefault(5, []).append(lambda: sched2("k")); fill.setdefault(7, []).append(half0); fill.setdefault(11, []).append(half1)
        else:
            fill.setdefault(7, []).append(lambda: sched1("k")); fill.setdefault(11, []).append(lambda: sched2("k"))
    fill.setdefault(15, []).append(stampw)
    for t in range(B):
        pump(t, "k", skip=t < ep)
        if ep and t == ep - 1: A(f"s_mov_b32 s{sSk}, 0")
        k = ring + 4 * (t % R)
        A(f"v_dot2_f32_bf16 v{P+t}, v{k}, v{q}, 0")
        for e in range(1, 4): A(f"v_dot2_f32_bf16 v{P+t}, v{k+e}, v{q+e}, v{P+t}")
        for f in fill.get(t, []): f()
    A(f"s_mov_b64 s[{sCu}:{sCu+1}], s[{sNx}:{sNx+1}]")
    A(f"s_mov_b32 s{sCur}, s{sNxt}")
    A(f"s_cmp_lg_u32 s{sI}, {NC}")
    A("s_cbranch_scc1 L_k")
    def early(i):
        if i < ep:
            A(f"s_waitcnt vmcnt({FL-1})"); ld.force = True; ld(F + i)
    A(f"s_add_u32 s{sT}, s{sH}, 256")
    A(f"buffer_load_dwordx4 v[{q}:{q+3}], v{qoff}, s[{sQ}:{sQ+3}], s{sT} offen")
    L1(7)
    A(f"v_max3_f32 v{t0}, v{S+1}, v{S+2}, v{S+3}"); A(f"v_max3_f32 v{t1}, v{S+4}, v{S+5}, v{S+6}")
    L2(3)
    A(f"v_max3_f32 v{t0}, v{t0}, v{t1}, v{S+7}"); A(f"s_mov_b32 s{sI}, 0")
    L3(1)
    A(f"s_add_u32 s{sHo}, s{sHo}, {1 << 19}"); A(f"s_cmp_lg_u32 s{sHd}, 0")
    A(f"v_add_f32_dpp v{Q+4}, v{Q+4}, v{Q+4} quad_perm:[1,0,3,2] {full}")
    A(f"v_add_f32_dpp v{Q+5}, v{Q+5}, v{Q+5} quad_perm:[1,0,3,2] {full}")
    A(f"s_cselect_b32 s{sHo}, 0x20000000, s{sHo}")
    A(f"v_cndmask_b32 v{S}, v{Q+4}, v{Q+5}, s[{sM1}:{sM1+1}]")
    A(f"v_max_f32 v{t0}, v{t0}, v{S}")
    early(0)
    for c in (8, 4, 2, 1):
        A("s_nop 1"); A(f"v_max_f32_dpp v{t0}, v{t0}, v{t0} row_ror:{c} {full}")
    A(f"v_mov_b32 v{t1}, v{t0}")
    A("s_nop 1")
    A(f"v_permlane32_swap_b32 v{t0}, v{t1}")
    A("s_nop 0")
    A(f"v_max_f32 v{t0}, v{t0}, v{t1}")
    A(f"v_mov_b32 v{t1}, v{t0}")
    A("s_nop 1")
    A(f"v_permlane16_swap_b32 v{t0}, v{t1}")
    A("s_nop 0")
    A(f"v_max_f32 v{t0}, v{t0}, v{t1}")
    A(f"v_mul_f32 v{m}, s{sSc}, v{t0}")
    order = [1, 2, 3, 4, 5, 6, 7, 0]
    for j in order: A(f"v_fma_f32 v{S+j}, v{S+j}, s{sSc}, -v{m}")
    for j in order: A(f"v_exp_f32 v{S+j}, v{S+j}")
    early(1)
    if ep < 2: A("s_nop 0")
    for i, j in enumerate(order): A(f"v_cvt_pk_bf16_f32 v{P+i}, 0, v{S+j}")
    if ep: A(f"s_mov_b32 s{sSk}, 1")
    def lsum1():
        A(f"s_cmp_lg_u32 s{sI}, 1"); A("s_cbranch_scc1 L_l1")
        A(f"v_add_f32 v{t0}, v{phi}, v{P}")
        for j in range(1, 7): A(f"v_add_f32 v{t0}, v{t0}, v{P+j}")
        for c in (8, 4, 2, 1):
            A("s_nop 1"); A(f"v_add_f32_dpp v{t0}, v{t0}, v{t0} row_ror:{c} {full}")
        A(f"v_mov_b32 v{t2}, v{t0}")
        A(f"s_lshl_b32 s{sT}, s{sW}, 3"); A(f"s_add_u32 s{sT}, s{sT}, s{sLd}")
        A(f"v_permlane32_swap_b32 v{t0}, v{t2}")
        A(f"v_mov_b32 v{t3}, s{sT}")
        A(f"v_add_f32 v{t0}, v{t0}, v{t2}")
        A(f"v_mov_b32 v{t2}, v{t0}")
        A(f"s_lshr_b32 s{sT}, s{sLd}, 3"); A(f"v_mov_b32 v{t1}, s{sT}")
        A(f"v_permlane16_swap_b32 v{t0}, v{t2}")
        A(f"v_mov_b32 v{fw}, 1")
        A(f"v_add_f32 v{l}, v{t0}, v{t2}")
        A("s_mov_b64 exec, 1")
        A(f"ds_write_b64 v{t3}, v[{m}:{m+1}] offset:4096")
        A(f"ds_add_u32 v{t1}, v{fw} offset:4224")
        A("s_mov_b64 exec, -1")
        A("L_l1:")
    def fblock():
        A(f"s_cmp_lg_u32 s{sI}, {fI + 1}"); A("s_cbranch_scc1 L_f1")
        A(f"s_lshr_b32 s{sT}, s{sLd}, 3"); A(f"v_mov_b32 v{t1}, s{sT}"); A(f"v_mov_b32 v{t3}, s{sLd}")
        A("L_f0:")
        A(f"ds_read_b32 v{t0}, v{t1} offset:4224")
        A(f"ds_read_b128 v[{P+8}:{P+11}], v{t3} offset:4096")
        A(f"ds_read_b128 v[{P+12}:{P+15}], v{t3} offset:4112")
        A("s_waitcnt lgkmcnt(0)")
        A(f"v_readfirstlane_b32 s{sT}, v{t0}")
        A(f"s_cmp_lg_u32 s{sT}, {W}"); A("s_cbranch_scc1 L_f0")
        A(f"v_max_f32 v{t0}, v{P+8}, v{P+10}"); A(f"v_max3_f32 v{t0}, v{t0}, v{P+12}, v{P+14}")
        for w in range(W): A(f"v_sub_f32 v{P+8+2*w}, v{P+8+2*w}, v{t0}")
        A(f"v_sub_f32 v{fw}, v{m}, v{t0}")
        for w in range(W): A(f"v_exp_f32 v{P+8+2*w}, v{P+8+2*w}")
        A(f"v_exp_f32 v{fw}, v{fw}")
        A(f"v_mul_f32 v{t0}, v{P+8}, v{P+9}")
        for w in range(1, W): A(f"v_fmac_f32 v{t0}, v{P+8+2*w}, v{P+9+2*w}")
        A(f"v_rcp_f32 v{t0}, v{t0}")
        A("s_nop 0")
        A(f"v_mul_f32 v{fw}, v{fw}, v{t0}")
        A("L_f1:")
    def vshift():
        for j in range(7): A(f"v_mov_b32 v{P+j}, v{P+j+1}")
    A("L_v:")
    if ctl or st: A(f"s_memrealtime s[{sTm}:{sTm+1}]")
    A(f"v_mov_b32 v{phi}, v{P}")
    A(f"v_lshrrev_b32 v{plo}, 16, v{P}")
    ld.force = True
    fill = {1: [vshift], 2: [lambda: adv("v")], 4: [lsum1], 9: [fblock]}
    if ctl:
        if half:
            fill.setdefault(3, []).append(lambda: sched1("v")); fill.setdefault(3, []).append(lambda: sched2("v")); fill.setdefault(7, []).append(half0); fill.setdefault(11, []).append(half1)
        else:
            fill.setdefault(7, []).append(lambda: sched1("v")); fill.setdefault(11, []).append(lambda: sched2("v"))
    fill.setdefault(13, []).append(stampw)
    for t in range(B):
        pump(t, "v", skip=t < ep)
        if ep and t == ep - 1: A(f"s_mov_b32 s{sSk}, 0")
        v = ring + 4 * (t % R)
        for e in range(4):
            A(f"v_dot2c_f32_bf16_dpp v{acc+2*e}, v{plo}, v{v+e} row_newbcast:{brev4(t)} {full}")
            A(f"v_dot2c_f32_bf16_dpp v{acc+2*e+1}, v{phi}, v{v+e} row_newbcast:{brev4(t)} {full}")
        for f in fill.get(t, []): f()
    A(f"s_mov_b64 s[{sCu}:{sCu+1}], s[{sNx}:{sNx+1}]")
    A(f"s_mov_b32 s{sCur}, s{sNxt}")
    A(f"s_cmp_lg_u32 s{sI}, {NC}")
    A("s_cbranch_scc1 L_v")
    A(f"s_lshl_b32 s{sT}, s{sW}, 9"); A(f"s_lshl_b32 s{sU}, s{sHd}, 11")
    for i in range(4): A(f"v_permlane32_swap_b32 v{acc+i}, v{acc+i+4}")
    A(f"v_add_u32 v{t2}, s{sU}, v{ladr}")
    A(f"s_lshr_b32 s{sU}, s{sLd}, 3")
    for i in range(4): A(f"v_add_f32 v{acc+i}, v{acc+i}, v{acc+i+4}")
    A(f"v_add_u32 v{t3}, s{sT}, v{t2}")
    A(f"v_mov_b32 v{t0}, s{sU}")
    for i in range(2): A(f"v_permlane16_swap_b32 v{acc+i}, v{acc+i+2}")
    A(f"v_mov_b32 v{t1}, 1")
    for i in range(2): A(f"v_add_f32 v{acc+i}, v{acc+i}, v{acc+i+2}")
    for i in range(2): A(f"v_mul_f32 v{acc+i}, v{acc+i}, v{fw}")
    A(f"ds_write_b64 v{t3}, v[{acc}:{acc+1}]")
    A("s_mov_b64 exec, 1")
    A(f"ds_add_rtn_u32 v{t1}, v{t0}, v{t1} offset:4228")
    A("s_mov_b64 exec, -1")
    A(f"s_mov_b32 s{sI}, 0"); A(f"s_mov_b32 s{sPh}, s{sHo}")
    for i in range(2, 8): A(f"v_mov_b32 v{acc+i}, 0")
    A("s_waitcnt lgkmcnt(0)")
    A(f"v_readfirstlane_b32 s{sT}, v{t1}")
    for i in range(2): A(f"v_mov_b32 v{acc+i}, 0")
    A(f"s_cmp_lg_u32 s{sT}, {W-1}")
    A("s_cbranch_scc1 L_next")
    A(f"ds_read2st64_b64 v[{S}:{S+3}], v{t2} offset0:0 offset1:1")
    A(f"ds_read2st64_b64 v[{S+4}:{S+7}], v{t2} offset0:2 offset1:3")
    A("s_waitcnt lgkmcnt(1)")
    A(f"v_add_f32 v{t0}, v{S}, v{S+2}"); A(f"v_add_f32 v{t1}, v{S+1}, v{S+3}")
    A("s_waitcnt lgkmcnt(0)")
    A(f"v_add_f32 v{t2}, v{S+4}, v{S+6}"); A(f"v_add_f32 v{t3}, v{S+5}, v{S+7}")
    A(f"v_add_f32 v{t0}, v{t0}, v{t2}"); A(f"v_add_f32 v{t1}, v{t1}, v{t3}")
    A(f"v_cvt_pk_bf16_f32 v{t0}, v{t0}, v{t1}")
    A(f"buffer_store_dword v{t0}, v{oadr}, s[{sO}:{sO+3}], s{sH} offen {of}")
    A("L_next:")
    A(f"s_cmp_lg_u32 s{sHd}, 0")
    A("s_cbranch_scc1 L_fin")
    A(f"s_add_u32 s{sH}, s{sH}, 256")
    A(f"s_mov_b32 s{sHd}, 1"); A(f"s_mov_b32 s{sLd}, 64")
    A("s_branch L_k")
    A("L_fin:")
    if st:
        A("s_waitcnt vmcnt(0)")
        A("s_memrealtime s[66:67]")
        A("s_getreg_b32 s68, hwreg(HW_REG_XCC_ID)")
        A("s_getreg_b32 s69, hwreg(HW_REG_HW_ID)")
        A("s_waitcnt lgkmcnt(0)")
        Y = X
        A(f"v_mov_b32 v{Y}, s60"); A(f"v_mov_b32 v{Y+1}, s62"); A(f"v_mov_b32 v{Y+2}, s66"); A(f"v_mov_b32 v{Y+3}, s68"); A(f"v_mov_b32 v{Y+4}, s69")
        A(f"s_mul_i32 s70, s2, {W}"); A(f"s_add_u32 s70, s70, s{sW}")
        A("s_lshl_b32 s71, s70, 8"); A("s_add_u32 s71, s71, 0x100000"); A(f"v_lshl_add_u32 v{t0}, v0, 2, s71")
        A(f"global_store_dword v{t0}, v{stv}, s[58:59]")
        A(f"v_mov_b32 v{Y+5}, {B}"); A(f"v_mov_b32 v{Y+6}, s57"); A(f"v_mov_b32 v{Y+7}, 1")
        A("s_lshl_b32 s70, s70, 5"); A(f"v_mov_b32 v{t0}, s70")
        A("s_mov_b64 exec, 1")
        A(f"global_store_dwordx4 v{t0}, v[{Y}:{Y+3}], s[58:59]")
        A(f"global_store_dwordx4 v{t0}, v[{Y+4}:{Y+7}], s[58:59] offset:16")
    A("L_end:")
    A("s_endpgm")
    txt = []
    for x in L:
        if x == "ALIGN64": txt.append("    .p2alignl 6, 0xbf800000")
        else: txt.append(("" if x.endswith(":") else "    ") + x)
    return wrap("\n".join(txt) + "\n", 256, 64 * W, lds, nv, 80 if st else nsg)

def mk(check=True, **kw):
    name = "v4_" + "_".join(f"{k}{str(v).replace(' ','')}" for k, v in kw.items())
    return build(gen(**kw), name, check=check)
def emit(cfgs, n=11, modes=8, fn="run.sh", extra="-t 3", more=[]):
    specs = [mk(**c) for c in cfgs] + more
    open("work/" + fn, "w").write(f"./work/bench -n {n} -m {modes} {extra} " + " ".join(specs) + "\n")
    files = ["work/bench", "work/" + fn] + [s.split(",")[0] for s in specs]
    print(json.dumps(files))
```
